```python
import torch

def _softmax(x, axis=-1):
    return torch.softmax(x, dim=axis)
def _gelu(x):
    return torch.nn.functional.gelu(x, approximate="tanh")
def _silu(x):
    return torch.nn.functional.silu(x)
def _sigmoid(x):
    return torch.sigmoid(x)
def _layernorm(x, axis=-1, eps=1e-5):
    m = x.mean(dim=axis, keepdim=True)
    v = x.var(dim=axis, keepdim=True, unbiased=False)
    return (x - m) / torch.sqrt(v + eps)
def _scatter_add(tgt, idx, src, axis=0):
    return tgt.clone().index_add_(axis, idx, src)
def _segment_sum(src, seg, n):
    out = torch.zeros((n,) + src.shape[1:], dtype=src.dtype)
    return out.index_add_(0, seg, src)
def _pad(x, pw):
    flat = tuple(v for pair in reversed(pw) for v in pair)
    return torch.nn.functional.pad(x, flat)

kernel_name = 'gated_mix__compressed_kv_cla__gqa_block_cached__decode'

def setup_inputs():

    _w = (lambda a: (lambda t: t.to(torch.bfloat16) if t.is_floating_point() else t)(torch.as_tensor(a)))
    def _A_setup():
        B, H, Sq, Sk, D, M = 1, 32, 1, 16384, 128, 576
        Dc = 4 * D
        return {
            "x": _w((lambda *s: torch.randn(*s, dtype=torch.bfloat16) * 0.05)(B, Sq, M)),
            "c_kv": _w((lambda *s: torch.randn(*s, dtype=torch.bfloat16) * 0.2)(B, Sk, Dc)),
            "w_q": _w((lambda *s: torch.randn(*s, dtype=torch.bfloat16) * 3.2)(M, H, D) * (M ** -0.5)),
            "w_uk": _w((lambda *s: torch.randn(*s, dtype=torch.bfloat16) * 3.2)(Dc, H, D) * (Dc ** -0.5)),
            "w_uv": _w((lambda *s: torch.randn(*s, dtype=torch.bfloat16) * 0.2)(Dc, H, D) * (Dc ** -0.5)),
            "w_o": _w((lambda *s: torch.randn(*s, dtype=torch.bfloat16) * 0.2)(H, D, M) * ((H * D) ** -0.5)),
        }
    _A_in = _A_setup()

    def _B_setup():
        B, Sq, D = 1, 1, 576
        Hq, Hkv, Sk, Dh = 32, 16, 16384, 128
        assert Hq % Hkv == 0, (Hq, Hkv)
        return {
            "x": _w((lambda *s: torch.randn(*s, dtype=torch.bfloat16) * 0.05)(B, Sq, D)),
            "k_cache": _w((lambda *s: torch.randn(*s, dtype=torch.bfloat16) * 3.2)(B, Hkv, Sk, Dh)),
            "v_cache": _w((lambda *s: torch.randn(*s, dtype=torch.bfloat16) * 0.1)(B, Hkv, Sk, Dh)),
            "wq": _w((lambda *s: torch.randn(*s, dtype=torch.bfloat16) * 3.2)(D, Hq * Dh) * (D ** -0.5)),
            "wo": _w((lambda *s: torch.randn(*s, dtype=torch.bfloat16) * 0.1)(Hq * Dh, D) * ((Hq * Dh) ** -0.5)),
        }
    _B_in = _B_setup()

    return {
        "A_x": _A_in["x"],
        "A_c_kv": _A_in["c_kv"],
        "A_w_q": _A_in["w_q"],
        "A_w_uk": _A_in["w_uk"],
        "A_w_uv": _A_in["w_uv"],
        "A_w_o": _A_in["w_o"],
        "B_x": _B_in["x"],
        "B_k_cache": _B_in["k_cache"],
        "B_v_cache": _B_in["v_cache"],
        "B_wq": _B_in["wq"],
        "B_wo": _B_in["wo"],
        "gate_w": _w((lambda *s: torch.randn(*s, dtype=torch.bfloat16) * 0.05)(576) * 16.0),
    }

def reference(A_x, A_c_kv, A_w_q, A_w_uk, A_w_uv, A_w_o, B_x, B_k_cache, B_v_cache, B_wq, B_wo, gate_w):
    def _A_ref(x, c_kv, w_q, w_uk, w_uv, w_o):
        B, Sq, M = x.shape[0], x.shape[1], x.shape[2]
        Sk = c_kv.shape[1]
        H, D = w_q.shape[1], w_q.shape[2]
        q = torch.einsum("bqm,mhd->bhqd", x, w_q)
        k = torch.einsum("bkc,chd->bhkd", c_kv, w_uk)
        v = torch.einsum("bkc,chd->bhkd", c_kv, w_uv)
        scores = torch.einsum("bhqd,bhkd->bhqk", q, k) * (D ** -0.5)
        off = Sk - Sq
        qi = torch.arange(Sq)[:, None]
        kj = torch.arange(Sk)[None, :]
        cmask = kj <= (qi + off)
        scores = torch.where(cmask[None, None], scores, -1e9)
        p = _softmax(scores, axis=-1)
        ctx = torch.einsum("bhqk,bhkd->bhqd", p, v)
        return torch.einsum("bhqd,hdm->bqm", ctx, w_o)

    def _B_ref(x, k_cache, v_cache, wq, wo):
        B, Sq, D = x.shape
        Hq, Dh = 32, 128
        Hkv = k_cache.shape[1]
        rep = Hq // Hkv
        q = (lambda x, *d: x.permute(*d))((x @ wq).reshape(B, Sq, Hq, Dh), 0, 2, 1, 3)
        k = (lambda x, n, axis: torch.repeat_interleave(x, n, dim=axis))(k_cache, rep, axis=1)
        v = (lambda x, n, axis: torch.repeat_interleave(x, n, dim=axis))(v_cache, rep, axis=1)
        scores = torch.einsum("bhqd,bhkd->bhqk", q, k) * (Dh ** -0.5)
        p = _softmax(scores, axis=-1)
        o = torch.einsum("bhqk,bhkd->bhqd", p, v)
        return (lambda x, *d: x.permute(*d))(o, 0, 2, 1, 3).reshape(B, Sq, Hq * Dh) @ wo

    x = A_x
    g = _sigmoid((x * gate_w).sum(-1, keepdims=True))
    a = _A_ref(x, A_c_kv, A_w_q, A_w_uk, A_w_uv, A_w_o)
    b = _B_ref(x, B_k_cache, B_v_cache, B_wq, B_wo)
    return g * a + (1 - g) * b
```

```python
NAME = "gated_mix__compressed_kv_cla__gqa_block_cached__decode"

HEADER = """; Kernarg layout (120 bytes, ptrs only, base s[0:1]):
"""


class Asm:
    def __init__(self):
        self.lines = []

    def __call__(self, s=""):
        for l in s.split("\n"):
            self.lines.append(l)

    def label(self, s):
        self.lines.append(s + ":")

    def text(self):
        return "\n".join(self.lines) + "\n"


def kernel_begin(a, name):
    a(".text")
    a(f".globl {name}")
    a(".p2align 8")
    a(f".type {name},@function")
    a(f"{name}:")


def descriptor(name, vgpr, sgpr=102, accum=None, wg_y=False):
    if accum is None:
        accum = min(256, (vgpr + 3) // 4 * 4)
    s = ['.section .rodata,"a"', ".p2align 6", f".amdhsa_kernel {name}",
         f"  .amdhsa_next_free_vgpr {vgpr}", f"  .amdhsa_next_free_sgpr {sgpr}",
         f"  .amdhsa_accum_offset {accum}", "  .amdhsa_group_segment_fixed_size 0",
         "  .amdhsa_kernarg_size 120", "  .amdhsa_user_sgpr_count 2",
         "  .amdhsa_user_sgpr_kernarg_segment_ptr 1", "  .amdhsa_system_sgpr_workgroup_id_x 1"]
    if wg_y:
        s.append("  .amdhsa_system_sgpr_workgroup_id_y 1")
    s += ["  .amdhsa_float_denorm_mode_32 3", ".end_amdhsa_kernel"]
    return "\n".join(s) + "\n"


def file_header(launches):
    s = HEADER
    if len(launches) == 1 and launches[0][0] == NAME + "_kernel":
        k, g, b, lds = launches[0]
        s += f"; @launch grid=({g},1,1) block=({b},1,1) lds={lds}\n"
    else:
        for k, g, b, lds in launches:
            s += f"; @launch kernel={k} grid=({g},1,1) block=({b},1,1) lds={lds}\n"
    s += '.amdgcn_target "amdgcn-amd-amdhsa--gfx950"\n'
    return s
```

```python
import sys
from asmlib import *


def gen(path, nwg=256, nw=8, depth=16, mode="reg", kpat="lin", nt="", empty=False):
    name = NAME + "_kernel"
    a = Asm()
    lds = 0
    if mode == "lds":
        lds = nw * depth * 1024
    a(file_header([(name, nwg, nw * 64, lds)]))
    kernel_begin(a, name)
    a(f"  s_cmp_ge_u32 s2, {nwg}")
    a("  s_cbranch_scc1 L_end")
    if empty:
        a("  s_branch L_end")
    a("  s_load_dwordx4 s[4:7], s[0:1], 56")
    a("  v_lshrrev_b32 v1, 6, v0")
    a("  v_and_b32 v0, 63, v0")
    a("  s_nop 0")
    a("  v_readfirstlane_b32 s3, v1")
    bytes_per_wg = 64 * 1024 * 1024 // nwg
    tiles_per_wave = bytes_per_wg // 8192 // nw
    a("  s_waitcnt lgkmcnt(0)")
    a("  s_mov_b32 s8, s4\n  s_mov_b32 s9, s5\n  s_mov_b32 s10, 0x4000000\n  s_mov_b32 s11, 0x20000")
    a("  s_mov_b32 s12, s6\n  s_mov_b32 s13, s7\n  s_mov_b32 s14, 0x4000000\n  s_mov_b32 s15, 0x20000")
    a("  v_lshlrev_b32 v2, 4, v0")
    if kpat == "lin":
        a("  v_mov_b32 v3, v2")
        koffs = [i * 1024 for i in range(8)]
    elif kpat == "row64":
        a("  v_and_b32 v3, 15, v0\n  v_lshlrev_b32 v3, 8, v3\n  v_lshrrev_b32 v4, 4, v0\n  v_lshl_add_u32 v3, v4, 4, v3")
        koffs = [0, 64, 128, 192, 4096, 4096 + 64, 4096 + 128, 4096 + 192]
    elif kpat == "row128":
        a("  v_and_b32 v3, 7, v0\n  v_lshlrev_b32 v3, 8, v3\n  v_lshrrev_b32 v4, 3, v0\n  v_lshl_add_u32 v3, v4, 4, v3")
        koffs = [0, 128, 2048, 2048 + 128, 4096, 4096 + 128, 6144, 6144 + 128]
    voffs = [i * 1024 for i in range(8)]
    a(f"  s_mul_i32 s16, s2, {bytes_per_wg}")
    a(f"  s_lshl_b32 s17, s3, 13")
    a(f"  s_add_u32 s16, s16, s17")
    seq = []
    for t in range(tiles_per_wave):
        for j in range(8):
            seq.append(("k", t, koffs[j]))
        for j in range(8):
            seq.append(("v", t, voffs[j]))
    if mode == "lds":
        a(f"  s_mul_i32 s20, s3, {depth * 1024}")
    cur_t = 0
    for i, (kind, t, off) in enumerate(seq):
        if t != cur_t:
            a(f"  s_add_u32 s16, s16, {nw * 8192}")
            cur_t = t
        slot = i % depth
        if i >= depth:
            a(f"  s_waitcnt vmcnt({depth - 1})")
        srd = "s[8:11]" if kind == "k" else "s[12:15]"
        vo = "v3" if kind == "k" else "v2"
        hi, lo = divmod(off, 4096)
        so = "s16"
        if hi:
            a(f"  s_add_u32 s18, s16, {hi * 4096}")
            so = "s18"
        if mode == "reg":
            r = 8 + slot * 4
            a(f"  buffer_load_dwordx4 v[{r}:{r + 3}], {vo}, {srd}, {so} offen offset:{lo} {nt}")
        else:
            a(f"  s_add_u32 s21, s20, {slot * 1024 - lo + 4096}")
            a(f"  s_sub_u32 m0, s21, 4096") if False else None
            a(f"  s_add_u32 m0, s20, {slot * 1024}")
            a(f"  s_add_u32 s19, {so}, {lo}")
            a(f"  buffer_load_dwordx4 {vo}, {srd}, s19 offen {nt} lds")
    a("  s_waitcnt vmcnt(0)")
    a.label("L_end")
    a("  s_endpgm")
    nv = 8 + (depth * 4 if mode == "reg" else 0)
    a(descriptor(name, max(nv, 8), 40))
    open(path, "w").write(a.text())


if __name__ == "__main__":
    gen("empty.s", empty=True)
    for nt in ["", "nt"]:
        for kp in ["lin", "row64", "row128"]:
            gen(f"reg_w8_d16_{kp}_{nt}.s", nw=8, depth=16, kpat=kp, nt=nt)
        gen(f"reg_w4_d32_lin_{nt}.s", nw=4, depth=32, nt=nt)
        gen(f"reg_w8_d8_lin_{nt}.s", nw=8, depth=8, nt=nt)
        gen(f"reg_w16_d8_lin_{nt}.s", nw=16, depth=8, nt=nt)
        gen(f"reg_w8_d32_lin_{nt}.s", nw=8, depth=32, nt=nt)
        gen(f"reg_w16_d16_lin_{nt}.s", nw=16, depth=16, nt=nt)
        gen(f"lds_w8_d16_lin_{nt}.s", nw=8, depth=16, mode="lds", nt=nt)
        gen(f"lds_w4_d32_lin_{nt}.s", nw=4, depth=32, mode="lds", nt=nt)
```

```python
from gen_stream import gen
for nwg in (64, 128, 192, 256):
    for kp in ("lin", "row64", "row128"):
        if (64*1024*1024 // nwg) % (8192*8) == 0:
            gen(f"s4_n{nwg}_{kp}.s", nwg=nwg, nw=8, depth=16, mode="reg", nt="nt", kpat=kp)
gen("s4_n64_lds.s", nwg=64, nw=8, depth=16, mode="lds", nt="nt")
gen("s4_n64_w16.s", nwg=64, nw=16, depth=16, mode="reg", nt="nt")
gen("s4_n64_d4.s", nwg=64, nw=8, depth=4, mode="reg", nt="nt")
gen("s4_n64_d8.s", nwg=64, nw=8, depth=8, mode="reg", nt="nt")
gen("s4_n64_d32.s", nwg=64, nw=8, depth=32, mode="reg", nt="nt")
```
